```python
import torch

def _softmax(x, axis=-1):
    return torch.softmax(x, dim=axis)
def _gelu(x):
    return torch.nn.functional.gelu(x, approximate="tanh")
def _silu(x):
    return torch.nn.functional.silu(x)
def _sigmoid(x):
    return torch.sigmoid(x)
def _layernorm(x, axis=-1, eps=1e-5):
    m = x.mean(dim=axis, keepdim=True)
    v = x.var(dim=axis, keepdim=True, unbiased=False)
    return (x - m) / torch.sqrt(v + eps)
def _scatter_add(tgt, idx, src, axis=0):
    return tgt.clone().index_add_(axis, idx, src)
def _segment_sum(src, seg, n):
    out = torch.zeros((n,) + src.shape[1:], dtype=src.dtype)
    return out.index_add_(0, seg, src)
def _pad(x, pw):
    flat = tuple(v for pair in reversed(pw) for v in pair)
    return torch.nn.functional.pad(x, flat)

kernel_name = 'concat_heads__mha_block_cached__mha_block_cached__near_ridge'

def setup_inputs():

    _w = (lambda a: (lambda t: t.to(torch.bfloat16) if t.is_floating_point() else t)(torch.as_tensor(a)))
    def _A_setup():
        B, Sq, D = 8, 128, 1024
        H, Sk, Dh = 32, 1024, 128
        return {
            "x": _w((lambda *s: torch.randn(*s, dtype=torch.bfloat16) * 0.8)(B, Sq, D)),
            "k_cache": _w((lambda *s: torch.randn(*s, dtype=torch.bfloat16) * 0.8)(B, H, Sk, Dh)),
            "v_cache": _w((lambda *s: torch.randn(*s, dtype=torch.bfloat16) * 0.05)(B, H, Sk, Dh)),
            "wq": _w((lambda *s: torch.randn(*s, dtype=torch.bfloat16) * 0.8)(D, H * Dh) * (D ** -0.5)),
            "wo": _w((lambda *s: torch.randn(*s, dtype=torch.bfloat16) * 0.05)(H * Dh, D) * ((H * Dh) ** -0.5)),
        }
    _A_in = _A_setup()

    def _B_setup():
        B, Sq, D = 8, 128, 1024
        H, Sk, Dh = 32, 1024, 128
        return {
            "x": _w((lambda *s: torch.randn(*s, dtype=torch.bfloat16) * 0.8)(B, Sq, D)),
            "k_cache": _w((lambda *s: torch.randn(*s, dtype=torch.bfloat16) * 0.8)(B, H, Sk, Dh)),
            "v_cache": _w((lambda *s: torch.randn(*s, dtype=torch.bfloat16) * 0.05)(B, H, Sk, Dh)),
            "wq": _w((lambda *s: torch.randn(*s, dtype=torch.bfloat16) * 0.8)(D, H * Dh) * (D ** -0.5)),
            "wo": _w((lambda *s: torch.randn(*s, dtype=torch.bfloat16) * 0.05)(H * Dh, D) * ((H * Dh) ** -0.5)),
        }
    _B_in = _B_setup()

    return {
        "A_x": _A_in["x"],
        "A_k_cache": _A_in["k_cache"],
        "A_v_cache": _A_in["v_cache"],
        "A_wq": _A_in["wq"],
        "A_wo": _A_in["wo"],
        "B_x": _B_in["x"],
        "B_k_cache": _B_in["k_cache"],
        "B_v_cache": _B_in["v_cache"],
        "B_wq": _B_in["wq"],
        "B_wo": _B_in["wo"],
    }

def reference(A_x, A_k_cache, A_v_cache, A_wq, A_wo, B_x, B_k_cache, B_v_cache, B_wq, B_wo):
    def _A_ref(x, k_cache, v_cache, wq, wo):
        B, Sq, D = x.shape
        H, Dh = 32, 128
        q = (lambda x, *d: x.permute(*d))((x @ wq).reshape(B, Sq, H, Dh), 0, 2, 1, 3)
        scores = torch.einsum("bhqd,bhkd->bhqk", q, k_cache) * (Dh ** -0.5)
        p = _softmax(scores, axis=-1)
        o = torch.einsum("bhqk,bhkd->bhqd", p, v_cache)
        return (lambda x, *d: x.permute(*d))(o, 0, 2, 1, 3).reshape(B, Sq, H * Dh) @ wo

    def _B_ref(x, k_cache, v_cache, wq, wo):
        B, Sq, D = x.shape
        H, Dh = 32, 128
        q = (lambda x, *d: x.permute(*d))((x @ wq).reshape(B, Sq, H, Dh), 0, 2, 1, 3)
        scores = torch.einsum("bhqd,bhkd->bhqk", q, k_cache) * (Dh ** -0.5)
        p = _softmax(scores, axis=-1)
        o = torch.einsum("bhqk,bhkd->bhqd", p, v_cache)
        return (lambda x, *d: x.permute(*d))(o, 0, 2, 1, 3).reshape(B, Sq, H * Dh) @ wo

    a = _A_ref(A_x, A_k_cache, A_v_cache, A_wq, A_wo)
    b = _B_ref(B_x, B_k_cache, B_v_cache, B_wq, B_wo)
    return torch.concatenate([a, b], axis=-1)
```

```python
import re

class Em:
    def __init__(self):
        self.L = []
        self.pend = []
        self.done = 0
    def __call__(self, s):
        for x in s.split("\n"):
            x = x.strip()
            if x: self.L.append(x)
    def label(self, n): self.L.append(n + ":")
    def ds(self, s, tag):
        self.L.append(s); self.pend.append(tag)
    def need(self, *tags):
        idx = -1
        for t in tags:
            c = [i for i, x in enumerate(self.pend) if x == t]
            assert c, f"tag {t} never issued"
            idx = max(idx, c[-1])
        if idx < self.done: return False
        n = len(self.pend) - 1 - idx
        assert n <= 15, n
        self.L.append(f"s_waitcnt lgkmcnt({n})")
        self.done = idx + 1
        return True
    def drain(self):
        self.L.append("s_waitcnt lgkmcnt(0)"); self.pend = []; self.done = 0
    def forget(self, keep):
        self.pend = self.pend[len(self.pend) - keep:] if keep else []
        self.done = 0
    def text(self): return "\n".join(self.L) + "\n"

def vr(a, n=1):
    return f"v{a}" if n == 1 else f"v[{a}:{a+n-1}]"
def sr(a, n=1):
    return f"s{a}" if n == 1 else f"s[{a}:{a+n-1}]"

_R = re.compile(r"^-?(?:abs\()?([va])(?:(\d+)|\[(\d+):(\d+)\])\)?$")
def regs(tok):
    m = _R.match(tok.strip())
    if not m: return set()
    off = 0 if m.group(1) == "v" else 1000
    if m.group(2) is not None: return {off + int(m.group(2))}
    return set(range(off + int(m.group(3)), off + int(m.group(4)) + 1))

TRANS = ("v_exp_", "v_log_", "v_rcp_", "v_rsq_", "v_sqrt_", "v_sin_", "v_cos_")
def parse(line):
    line = line.split(";")[0].strip()
    if not line or line.endswith(":") or line.startswith("."): return None
    p = line.split(None, 1)
    op = p[0]; ops = []
    if len(p) > 1:
        ops = [x.strip().split()[0] if x.strip() else "" for x in p[1].split(",")]
    d = dict(op=op, w=set(), r=set(), c=set(), ab=set(), kind="other", states=1, line=line)
    if op == "s_nop": d["states"] = int(ops[0]) + 1
    if op.startswith("v_mfma"):
        d["kind"] = "mfma"; d["w"] = regs(ops[0]); d["ab"] = regs(ops[1]) | regs(ops[2]); d["c"] = regs(ops[3])
        d["r"] = d["ab"] | d["c"]; d["passes"] = 8 if "32x32" in op else 4
    elif op.startswith("v_permlane"):
        d["kind"] = "perm"; d["w"] = regs(ops[0]) | regs(ops[1]); d["r"] = set(d["w"])
    elif op.startswith("v_cmp"):
        d["kind"] = "valu"; d["r"] = set().union(*[regs(x) for x in ops[1:]])
    elif op.startswith("v_readfirstlane") or op.startswith("v_readlane"):
        d["kind"] = "rdlane"; d["r"] = regs(ops[1])
    elif op.startswith("v_"):
        d["kind"] = "valu"; d["w"] = regs(ops[0]); d["r"] = set().union(*[regs(x) for x in ops[1:]]) if len(ops) > 1 else set()
        if op.startswith("v_fmac"): d["r"] |= d["w"]
        d["trans"] = op.startswith(TRANS)
    elif op.startswith("ds_read"):
        d["kind"] = "dsr"; d["w"] = regs(ops[0]); d["r"] = regs(ops[1])
    elif op.startswith("ds_write"):
        d["kind"] = "mem"; d["r"] = set().union(*[regs(x) for x in ops])
    elif op.startswith("buffer_store") or op.startswith("global_store") or "atomic" in op:
        d["kind"] = "mem"; d["r"] = set().union(*[regs(x) for x in ops])
        if "x4" in op or "x3" in op:
            d["wide"] = regs(ops[0]) if op.startswith("buffer") else regs(ops[1])
    elif op.startswith("buffer_load") or op.startswith("global_load"):
        d["kind"] = "dsr"
        if " lds" in line or "_lds_" in op: d["r"] = regs(ops[0]); d["dma"] = True
        else: d["w"] = regs(ops[0]); d["r"] = regs(ops[1])
    if op.startswith("s_") and ops and ops[0] == "m0": d["m0w"] = True
    return d

def check(lines):
    I = [d for d in map(parse, lines) if d]
    bad = []
    for i, a in enumerate(I):
        dist = 0
        for j in range(i + 1, min(i + 24, len(I))):
            b = I[j]
            need = 0
            valu_b = b["kind"] in ("valu", "perm", "rdlane")
            if a["kind"] == "mfma":
                P = a["passes"]
                if b["kind"] == "mfma":
                    if a["w"] & b["ab"]: need = 8 if P == 4 else 12
                    elif a["w"] & b["c"] and not (a["w"] == b["c"] and P == b["passes"]): need = 6 if P == 4 else 10
                    elif a["w"] & b["w"] and not (a["w"] == b["c"]): need = 8 if P == 4 else 12
                elif valu_b or b["kind"] in ("mem", "dsr"):
                    if a["w"] & (b["r"] | b["w"]): need = 8 if P == 4 else 12
                    elif valu_b and a["c"] & b["w"]: need = 3 if P == 4 else 7
            elif a["kind"] in ("valu", "perm"):
                if b["kind"] == "mfma" and a["w"] & b["r"]: need = 2
                if b["kind"] == "perm" and a["w"] & b["r"]: need = 2
                if b["kind"] == "rdlane" and a["w"] & b["r"]: need = 1
                if a.get("trans") and b["kind"] in ("valu", "perm") and not b.get("trans") and a["w"] & b["r"]: need = max(need, 1)
            elif a.get("wide") and a["wide"] & b["w"]: need = 2
            if a.get("m0w") and b.get("dma"): need = 1
            if dist < need: bad.append(f"need {need} got {dist}: [{a['line']}] -> [{b['line']}]")
            if b["op"] in ("s_branch", "s_endpgm"): break
            dist += b["states"]
            if dist >= 20: break
    return bad
```

```python
import sys, math, struct
sys.path.insert(0, "work")
from asmlib import Em, vr, sr, check
NAME = "concat_heads__mha_block_cached__mha_block_cached__near_ridge"
def f2u(x): return struct.unpack("<I", struct.pack("<f", x))[0]
CSC = f2u(math.log2(math.e) / math.sqrt(128.0))
K16 = 16384
SX, SK, SV, SWQ, SWS, SWO, SOUT = 4, 8, 12, 16, 20, 24, 28
sWAVE, sH, sB, sBR, sROT, sPROG, sITEM, sCNT, sA, sBo, sM4, sM2, sKV, sT0, sT1, sT2, sNT, sOB = range(64, 82)
sST = 84
vST, vL0, vL1, vM0, vM1, vT0, vT1, vT2, vT3 = 1, 2, 3, 4, 5, 6, 7, 8, 9
vK, vV, vW, vX = 10, 18, 22, 30
vO, vQ, vQ2, vNM, vS, vP, vR = 32, 96, 128, 160, 176, 208, 216
MF32 = "v_mfma_f32_32x32x16_bf16"; MF16 = "v_mfma_f32_16x16x32_bf16"

class G:
    def __init__(s, **o):
        s.o = dict(nt=True, thr=0, diag=False, progs=(0x2121 | 0x4400, 0x2121 | 0x4400), LA=5, prio=True, qrot=True, prot=True, T=8.0, ntst=False)
        s.o.update(o); s.e = Em(); s.uid = 0; s.ool = []; s.nst = 0
    def stamp(s):
        if s.o["diag"]:
            s.e(f"s_memrealtime s[100:101]\ns_waitcnt lgkmcnt(0)\ns_mov_b32 m0, s{sST+15}\ns_nop 0\ns_movreld_b32 s{sST}, s100\ns_add_u32 s{sST+15}, s{sST+15}, 1")
    def head(s, lab):
        e = s.e
        e(f".globl {lab}\n.p2align 8\n.type {lab},@function"); e.label(lab)
        e(f"s_cmp_ge_u32 s2, 256\ns_cbranch_scc1 {lab}_end")
        e("s_load_dwordx8 s[32:39], s[0:1], 0\ns_load_dwordx8 s[40:47], s[0:1], 32\ns_load_dwordx4 s[48:51], s[0:1], 64\ns_load_dwordx2 s[52:53], s[0:1], 80\ns_load_dwordx2 s[54:55], s[0:1], 96")
        e(f"v_lshrrev_b32 v1, 6, v0\nv_and_b32 v0, 63, v0\ns_and_b32 s{sT0}, s2, 7\nv_readfirstlane_b32 s{sWAVE}, v1\ns_lshr_b32 s{sBR}, s{sT0}, 2\ns_lshr_b32 s{sT1}, s2, 3")
        if s.o["diag"]:
            for i in range(16): e(f"s_mov_b32 s{sST+i}, 0")
        e(f"s_cmp_eq_u32 s{sBR}, 0\ns_waitcnt lgkmcnt(0)")
        for srd, a, b, n in ((SX, 32, 42, 1 << 21), (SK, 34, 44, 1 << 26), (SV, 36, 46, 1 << 26), (SWQ, 38, 48, 1 << 23), (SWO, 40, 50, 1 << 23)):
            e(f"s_cselect_b32 s{srd}, s{a}, s{b}\ns_cselect_b32 s{srd+1}, s{a+1}, s{b+1}\ns_mov_b32 s{srd+2}, {n}\ns_mov_b32 s{srd+3}, 0x20000")
        for srd, a, n in ((SWS, 54, 1 << 24), (SOUT, 52, 1 << 22)):
            e(f"s_mov_b32 s{srd}, s{a}\ns_mov_b32 s{srd+1}, s{a+1}\ns_mov_b32 s{srd+2}, {n}\ns_mov_b32 s{srd+3}, 0x20000")
        s.stamp()
    def tail(s, lab, koff):
        e = s.e
        e.label(lab + "_fin")
        if s.o["diag"]:
            s.stamp()
            e(f"s_lshl_b32 s{sT0}, s2, 3\ns_add_u32 s{sT0}, s{sT0}, s{sWAVE}\ns_lshl_b32 s{sT0}, s{sT0}, 6\ns_add_u32 s{sT0}, s{sT0}, {(1<<25) + koff*(1<<20)}\nv_mov_b32 v0, s{sT0}")
            for i in range(4):
                for j in range(4): e(f"v_mov_b32 v{4+j}, s{sST+4*i+j}")
                e(f"global_store_dwordx4 v0, v[4:7], s[54:55] offset:{16*i}\ns_nop 1")
        e.label(lab + "_end"); e("s_endpgm")
        for x in s.ool: e(x)
        s.ool = []
    def desc(s, lab):
        return f""".amdhsa_kernel {lab}
  .amdhsa_next_free_vgpr 256
  .amdhsa_next_free_sgpr 102
  .amdhsa_accum_offset 256
  .amdhsa_group_segment_fixed_size 0
  .amdhsa_kernarg_size 104
  .amdhsa_user_sgpr_count 2
  .amdhsa_user_sgpr_kernarg_segment_ptr 1
  .amdhsa_system_sgpr_workgroup_id_x 1
.end_amdhsa_kernel
"""
    def fld(s, dst, shift, bits):
        s.e(f"v_bfe_u32 v{dst}, v0, {shift}, {bits}")
    def disp(s, pre, ops):
        e = s.e
        e.label(pre + "_disp")
        e(f"s_and_b32 s{sT0}, s{sPROG}, 3\ns_bfe_u32 s{sITEM}, s{sPROG}, 0x10002\ns_bfe_u32 s{sT2}, s{sPROG}, 0x10003\ns_lshr_b32 s{sPROG}, s{sPROG}, 4")
        e(f"s_lshl_b32 s{sITEM}, s{sITEM}, 2\ns_add_u32 s{sITEM}, s{sITEM}, s{sB}")
        for k, l in ops: e(f"s_cmp_eq_u32 s{sT0}, {k}\ns_cbranch_scc1 {l}")
    def k1_ids(s):
        e = s.e
        e(f"s_and_b32 s{sH}, s{sT0}, 3\ns_lshl_b32 s{sH}, s{sH}, 3\ns_and_b32 s{sT2}, s{sT1}, 7\ns_add_u32 s{sH}, s{sH}, s{sT2}\ns_lshr_b32 s{sB}, s{sT1}, 3")
        e(f"s_add_u32 s{sROT}, s{sB}, s{sH}\ns_and_b32 s{sROT}, s{sROT}, 3\ns_lshl_b32 s{sROT}, s{sROT}, 2")
        if not s.o["qrot"]: e(f"s_mov_b32 s{sROT}, 0")
        e(f"s_and_b32 s{sT2}, s{sT1}, {s.o.get('cmask', 1)}\ns_cmp_eq_u32 s{sT2}, 0\ns_mov_b32 s{sT0}, {s.o['progs'][1]}\ns_cselect_b32 s{sPROG}, {s.o['progs'][0]}, s{sT0}")
    def dma(s, v, srd, so, off, nt=False):
        s.e(f"buffer_load_dwordx4 v{v}, {sr(srd,4)}, s{so} offen" + (f" offset:{off}" if off else "") + (" nt" if nt else "") + " lds")
        if nt and s.o["thr"]: s.e(f"s_waitcnt vmcnt({s.o['thr']})")
    def k1_loader(s, lab):
        e = s.e
        LK, LV, LW, LX = 10, 12, 13, 17
        e(f"s_sub_u32 s{sT0}, s{sWAVE}, 4\ns_lshl_b32 s{sM4}, s{sT0}, 12\ns_lshl_b32 s{sM2}, s{sT0}, 11")
        s.fld(2, 4, 2); s.fld(3, 0, 4); s.fld(4, 3, 3); s.fld(5, 0, 3)
        for i in range(2):
            e(f"s_lshl_b32 s{sT1}, s{sT0}, 3\ns_add_u32 s{sT1}, s{sT1}, {4*i}\nv_add_u32 v6, s{sT1}, v2\nv_and_b32 v7, 15, v6\nv_xor_b32 v7, v7, v3\nv_lshlrev_b32 v7, 4, v7\nv_lshl_add_u32 v7, v6, 8, v7\nv_subrev_u32 v{LK+i}, {1024*i}, v7")
        e(f"s_lshl_b32 s{sT1}, s{sT0}, 4\nv_add_u32 v6, s{sT1}, v2\nv_lshlrev_b32 v7, 2, v2\nv_xor_b32 v7, v7, v3\nv_lshlrev_b32 v7, 4, v7\nv_lshl_add_u32 v{LV}, v6, 8, v7")
        for i in range(4):
            e(f"s_lshl_b32 s{sT1}, s{sT0}, 4\ns_add_u32 s{sT1}, s{sT1}, {4*i}\nv_add_u32 v6, s{sT1}, v2\nv_or_b32 v7, {(i>>1)<<2}, v2\nv_lshlrev_b32 v7, 1, v7\nv_xor_b32 v7, v7, v3\nv_lshlrev_b32 v7, 4, v7\nv_lshl_add_u32 v7, v6, 13, v7\nv_subrev_u32 v{LW+i}, {1024*i}, v7")
        for i in range(4):
            e(f"s_lshl_b32 s{sT1}, s{sT0}, 5\ns_add_u32 s{sT1}, s{sT1}, {8*i}\nv_add_u32 v6, s{sT1}, v4\nv_add_u32 v7, {4*(i&1)}, v2\nv_xor_b32 v7, v7, v5\nv_lshlrev_b32 v7, 4, v7\nv_lshl_add_u32 v7, v6, 11, v7\nv_subrev_u32 v{LX+i}, {1024*i}, v7")
        s.disp("l1", ((1, "l1_q"), (2, "l1_a")))
        e(f"s_waitcnt vmcnt(0)\ns_barrier\ns_barrier\ns_branch {lab}_fin")
        e.label("l1_q")
        e(f"s_lshl_b32 s{sT1}, s{sH}, 8\ns_lshl_b32 s{sT2}, s{sITEM}, 18")
        for t in range(16):
            sl = (t % 4) * K16
            e(f"s_add_u32 s{sT0}, s{sROT}, {t}\ns_and_b32 s{sT0}, s{sT0}, 15\ns_lshl_b32 s{sA}, s{sT0}, 19\ns_add_u32 m0, s{sM4}, {sl}\ns_add_u32 s{sA}, s{sA}, s{sT1}")
            for i in range(4): s.dma(LW + i, SWQ, sA, 1024 * i)
            e(f"s_lshl_b32 s{sBo}, s{sT0}, 7\ns_add_u32 m0, s{sM4}, {65536+sl}\ns_add_u32 s{sBo}, s{sBo}, s{sT2}")
            for i in range(4): s.dma(LX + i, SX, sBo, 1024 * i)
            e("s_waitcnt vmcnt(8)\ns_barrier")
        e("s_branch l1_disp")
        e.label("l1_a")
        nt = s.o["nt"]
        e(f"s_lshl_b32 s{sKV}, s{sITEM}, 5\ns_add_u32 s{sKV}, s{sKV}, s{sH}\ns_lshl_b32 s{sKV}, s{sKV}, 18")
        for t in range(16):
            sl = (t % 4) * K16; n = 0
            subs = ([(0, 131072)] if t == 0 else []) + [(2*t+1, sl)] + ([(2*t+2, sl + 8192)] if t < 15 else [])
            for sub, dst in subs:
                e(f"s_add_u32 m0, s{sM2}, {dst}\ns_add_u32 s{sA}, s{sKV}, {sub*8192}")
                for i in range(2): s.dma(LK + i, SK, sA, 1024 * i, nt); n += 1
            e(f"s_add_u32 m0, s{sM4}, {65536+sl}\ns_add_u32 s{sA}, s{sKV}, {t*K16}")
            for i in range(4): s.dma(LV, SV, sA, 1024 * i, nt); n += 1
            e(f"s_waitcnt vmcnt({n})\ns_barrier")
        e("s_branch l1_disp")
    def k1_addr(s):
        e = s.e
        s.fld(vT0, 0, 5); s.fld(vT1, 5, 1); s.fld(vT2, 0, 4)
        e(f"v_xor_b32 v{vT2}, v{vT2}, v{vT1}\nv_lshlrev_b32 v{vT2}, 4, v{vT2}\nv_lshl_add_u32 v{vK}, v{vT0}, 8, v{vT2}")
        for k in range(1, 8): e(f"v_xor_b32 v{vK+k}, {32*k}, v{vK}")
        s.fld(vT0, 2, 2); s.fld(vT2, 1, 1); s.fld(vT3, 0, 1); e(f"v_lshlrev_b32 v{vT3}, 3, v{vT3}")
        s.fld(vM0, 4, 1)
        e(f"v_lshl_add_u32 v{vM1}, v{vM0}, 1, v{vT2}\nv_lshlrev_b32 v{vL0}, 2, v{vT0}\nv_xor_b32 v{vM1}, v{vM1}, v{vL0}\nv_lshl_add_u32 v{vM1}, v{vM1}, 4, v{vT3}")
        e(f"v_lshl_add_u32 v{vL0}, v{vT1}, 2, v{vT0}\nv_lshl_add_u32 v{vM1}, v{vL0}, 8, v{vM1}\nv_add_u32 v{vV}, 0x10000, v{vM1}")
        for d in range(1, 4): e(f"v_xor_b32 v{vV+d}, {64*d}, v{vV}")
        s.fld(vL1, 4, 2)
        e(f"v_lshl_or_b32 v{vM1}, v{vM0}, 2, v{vT0}\nv_lshlrev_b32 v{vM1}, 1, v{vM1}\nv_xor_b32 v{vM1}, v{vM1}, v{vT2}\nv_lshl_add_u32 v{vM1}, v{vM1}, 4, v{vT3}")
        e(f"v_lshl_add_u32 v{vL0}, v{vL1}, 3, v{vT0}\nv_lshl_add_u32 v{vW}, v{vL0}, 8, v{vM1}")
        for d in range(1, 8): e(f"v_xor_b32 v{vW+d}, {32*d}, v{vW}")
        s.fld(vT0, 0, 4); s.fld(vT2, 1, 3)
        e(f"v_xor_b32 v{vT2}, v{vT2}, v{vL1}\nv_lshlrev_b32 v{vT2}, 4, v{vT2}\nv_lshl_add_u32 v{vT2}, v{vT0}, 7, v{vT2}\ns_lshl_b32 s{sT0}, s{sWAVE}, 12\ns_add_u32 s{sT0}, s{sT0}, 0x10000\nv_add_u32 v{vX}, s{sT0}, v{vT2}\nv_xor_b32 v{vX+1}, 64, v{vX}")
        e(f"v_lshlrev_b32 v{vST}, 4, v0")
    def c_q(s):
        e = s.e; LA = 6
        e.label("c1_q")
        def rdW(f):
            f %= 64; t, ks, dt = f // 16, (f // 8) % 2, f % 8; r = vR + 4 * (f % 8)
            for h in range(2): e.ds(f"ds_read_b64_tr_b16 {vr(r+2*h,2)}, v{vW+dt} offset:{t*K16+(32*ks+4*h)*256}", ("W", f))
        def rdX(g, qt):
            g %= 8; r = vS + 8 * (g % 2) + 4 * qt
            e.ds(f"ds_read_b128 {vr(r,4)}, v{vX+g%2} offset:{(g//2)*K16+qt*2048}", ("X", g, qt))
        for qt in range(2): rdX(0, qt)
        for f in range(LA): rdW(f)
        for i in range(64): e(f"v_mov_b32 v{vO+i}, 0")
        e(f"s_mov_b32 s{sCNT}, 0")
        e.label("c1_q_loop"); e.forget(2 * LA + 2)
        e.pend = [("X", 0, 0), ("X", 0, 1)] + [("W", f) for f in range(LA) for h in range(2)]
        for f in range(64):
            g, dt = f // 8, f % 8
            for qt in range(2):
                if qt == 0:
                    e.need(("W", f), ("X", g, 0), ("X", g, 1))
                a = vO + 8 * dt + 4 * qt
                e(f"{MF16} {vr(a,4)}, {vr(vR+4*(f%8),4)}, {vr(vS+8*(g%2)+4*qt,4)}, {vr(a,4)}")
                if qt == 0:
                    if (f + LA) % 16 == 0: e("s_barrier")
                    if dt == 8 - LA: rdX(g + 1, 0), rdX(g + 1, 1)
                    rdW(f + LA)
        e(f"s_add_u32 s{sCNT}, s{sCNT}, 1\ns_cmp_lt_u32 s{sCNT}, 4\ns_cbranch_scc1 c1_q_loop")
        e(f"s_mov_b32 s{sT0}, {CSC}")
        for dt in range(8):
            a = vO + 8 * dt; q = vQ + 4 * dt
            for i in range(8): e(f"v_mul_f32 v{a+i}, s{sT0}, v{a+i}")
            for i in range(4): e(f"v_cvt_pk_bf16_f32 v{q+i}, v{a+2*i}, v{a+2*i+1}")
            if dt:
                e(f"v_permlane16_swap_b32 v{q-4}, v{q-2}\nv_permlane16_swap_b32 v{q-3}, v{q-1}")
        e.drain(); e("s_nop 0")
        e(f"v_permlane16_swap_b32 v{vQ+28}, v{vQ+30}\nv_permlane16_swap_b32 v{vQ+29}, v{vQ+31}")
        e(f"s_cmp_eq_u32 s{sT2}, 0\ns_cbranch_scc1 c1_next")
        for i in range(32): e(f"v_mov_b32 v{vQ2+i}, v{vQ+i}")
        e("s_branch c1_next")
    def rowmax(s, S, dst):
        return [f"v_max3_f32 v{vM0}, v{S}, v{S+1}, v{S+2}", f"v_max3_f32 v{vM1}, v{S+3}, v{S+4}, v{S+5}",
                f"v_max3_f32 v{vM0}, v{S+6}, v{S+7}, v{vM0}", f"v_max3_f32 v{vM1}, v{S+8}, v{S+9}, v{vM1}",
                f"v_max3_f32 v{vM0}, v{S+10}, v{S+11}, v{vM0}", f"v_max3_f32 v{vM1}, v{S+12}, v{S+13}, v{vM1}",
                f"v_max3_f32 v{vM0}, v{S+14}, v{S+15}, v{vM0}", f"v_max_f32 v{dst}, v{vM0}, v{vM1}"]
    def xhalf(s, op, r, t):
        return [f"v_mov_b32 v{t}, v{r}", "s_nop 1", f"v_permlane32_swap_b32 v{r}, v{t}", f"{op} v{r}, v{r}, v{t}"]
    def c_a(s):
        e = s.e; LA = s.o["LA"]
        e.label("c1_a")
        e(f"s_cmp_eq_u32 s{sT2}, 0\ns_cbranch_scc1 c1_a0")
        for i in range(32): e(f"v_mov_b32 v{vQ+i}, v{vQ2+i}")
        e.label("c1_a0")
        for k in range(8): e(f"v_add_u32 v{vS+16+k}, 0x20000, v{vK+k}")
        for k in range(8): e.ds(f"ds_read_b128 {vr(vR+4*k,4)}, v{vS+16+k}", ("K0", k))
        e(f"v_mov_b32 v{vL0}, 0\nv_mov_b32 v{vL1}, 0\ns_mov_b32 s{sCNT}, 0\ns_mov_b32 s{sT1}, {f2u(s.o['T'])}")
        def rd(m):
            m %= 128; n, j = m // 16, m % 16; base = (n // 2) * K16 + (n % 2) * 8192; r = vR + 4 * (m % 8)
            if j < 8: e.ds(f"ds_read_b128 {vr(r,4)}, v{vK+j} offset:{base}", ("F", m))
            else:
                sx, dt = (j - 8) // 4, (j - 8) % 4
                for h in range(2): e.ds(f"ds_read_b64_tr_b16 {vr(r+2*h,2)}, v{vV+dt} offset:{base+(16*sx+8*h)*256}", ("F", m))
        for k in range(8):
            e.need(("K0", k))
            e(f"{MF32} {vr(vS,16)}, {vr(vR+4*k,4)}, {vr(vQ+4*k,4)}, {vr(vS,16) if k else 0}")
            for i in range(8): e(f"v_mov_b32 v{vO+8*k+i}, 0")
        for m in range(LA): rd(m)
        e("s_nop 0")
        for x in s.rowmax(vS, vM0) + s.xhalf("v_max_f32", vM0, vM1): e(x)
        for i in range(16): e(f"v_sub_f32 v{vS+i}, v{vS+i}, v{vM0}")
        for i in range(16): e(f"v_xor_b32 v{vNM+i}, 0x80000000, v{vM0}")
        def iteration(n, last=False):
            Sc = vS + 16 * (n % 2); Sn = vS + 16 * ((n + 1) % 2)
            ex = lambda i: f"v_exp_f32 v{Sc+i}, v{Sc+i}"
            cv = lambda i: f"v_cvt_pk_bf16_f32 v{vP+i}, v{Sc+2*i}, v{Sc+2*i+1}"
            ad = lambda i: f"v_add_f32 v{vL0+i%2}, v{vL0+i%2}, v{Sc+i}"
            mx = s.rowmax(Sn, vM0)
            if last:
                fill = {7: [ex(i) for i in range(8)] + [cv(i) for i in range(4)] + [ad(0), ad(1)],
                        8: [ex(8), ex(9), ad(2)], 9: [ex(10), ex(11), ad(3), cv(4)], 10: [ex(12), ex(13), ex(14), cv(5)],
                        11: [ex(15), cv(6), ad(4), cv(7), ad(5), ad(6)], 12: [ad(7), ad(8), ad(9), ad(10), ad(11)], 13: [ad(12), ad(13), ad(14), ad(15)]}
            else:
                fill = {0: [ex(0), ex(1), ad(0)], 1: [ex(2), ex(3)], 2: [ex(4), ex(5), cv(0)], 3: [ex(6), cv(1)], 4: [ex(7), cv(2), ad(1)],
                        5: [ex(8), cv(3)], 6: [ex(9), ex(10)], 7: [ex(11), ad(2)], 8: [ex(12), ex(13)], 9: [ex(14), cv(4)],
                        10: [ex(15), cv(5), cv(6)], 11: [cv(7), mx[0], mx[1], ad(3)], 12: [mx[2], mx[3], ad(4), ad(5), ad(6)],
                        13: [mx[4], mx[5], ad(7), ad(8)], 14: [mx[6], ad(9), mx[7], ad(10), ad(11)],
                        15: [f"v_cmp_lt_f32 vcc, s{sT1}, v{vM0}", ad(12), ad(13), ad(14), ad(15)]}
            for j in range(16):
                m = 16 * n + j
                if last and j < 8:
                    if j == 7:
                        e.drain()
                        for mm in range(m + 1, m + 1 + LA): rd(mm)
                        for x in fill[7]: e(x)
                    continue
                if j % 2 == 0: e.need(("F", m % 128), ("F", (m + 1) % 128))
                r = vr(vR + 4 * (m % 8), 4)
                if j < 8: e(f"{MF32} {vr(Sn,16)}, {r}, {vr(vQ+4*j,4)}, {vr(Sn,16) if j else vr(vNM,16)}")
                else:
                    sx, dt = (j - 8) // 4, (j - 8) % 4
                    e(f"{MF32} {vr(vO+16*dt,16)}, {r}, {vr(vP+4*sx,4)}, {vr(vO+16*dt,16)}")
                if (m + LA) % 32 == 0: e("s_barrier")
                if not (last and j + LA >= 16): rd(m + LA)
                for x in fill.get(j, []): e(x)
            if last: return
            s.uid += 1; u = s.uid
            e(f"s_cbranch_vccnz c1_rs{u}"); e.label(f"c1_rb{u}")
            o = s.ool; o.append(f"c1_rs{u}:")
            o += s.xhalf("v_max_f32", vM0, vM1) + [f"v_max_f32 v{vM0}, 0, v{vM0}", f"v_exp_f32 v{vM1}, -v{vM0}", "s_nop 7"]
            o += [f"v_sub_f32 v{Sn+i}, v{Sn+i}, v{vM0}" for i in range(16)] + [f"v_sub_f32 v{vNM+i}, v{vNM+i}, v{vM0}" for i in range(16)]
            o += [f"v_mul_f32 v{r}, v{r}, v{vM1}" for r in [vL0, vL1] + list(range(vO, vO + 64))] + ["s_nop 1", f"s_branch c1_rb{u}"]
        e("s_nop 0")
        e.label("c1_a_loop"); e.forget(LA)
        for n in range(8):
            if n == 7: e(f"s_cmp_eq_u32 s{sCNT}, 3\ns_cbranch_scc1 c1_a_last")
            iteration(n)
        e(f"s_add_u32 s{sCNT}, s{sCNT}, 1\ns_branch c1_a_loop")
        e.label("c1_a_last")
        iteration(7, True)
        e(f"s_lshl_b32 s{sA}, s{sBR}, 3\ns_add_u32 s{sA}, s{sA}, s{sITEM}\ns_lshl_b32 s{sA}, s{sA}, 5\ns_add_u32 s{sA}, s{sA}, s{sH}\ns_lshl_b32 s{sA}, s{sA}, 2\ns_add_u32 s{sA}, s{sA}, s{sWAVE}\ns_lshl_b32 s{sA}, s{sA}, 13\ns_add_u32 s{sBo}, s{sA}, 4096")
        e(f"v_add_f32 v{vL0}, v{vL0}, v{vL1}")
        for x in s.xhalf("v_add_f32", vL0, vL1): e(x)
        e(f"v_rcp_f32 v{vL0}, v{vL0}\ns_nop 0")
        for b in range(8):
            a = vO + 8 * b; r = vR + 4 * b
            for i in range(8): e(f"v_mul_f32 v{a+i}, v{a+i}, v{vL0}")
            for i in range(4): e(f"v_cvt_pk_bf16_f32 v{r+i}, v{a+2*i}, v{a+2*i+1}")
            e(f"buffer_store_dwordx4 {vr(r,4)}, v{vST}, {sr(SWS,4)}, s{sA if b < 4 else sBo} offen offset:{(b%4)*1024}" + (" nt" if s.o["ntst"] else ""))
        e("s_branch c1_next")
    def k1(s, lab):
        e = s.e
        s.head(lab); s.k1_ids()
        e(f"s_cmp_ge_u32 s{sWAVE}, 4\ns_cbranch_scc1 l1_start")
        if s.o["prio"]: e("s_setprio 1")
        s.k1_addr()
        e("s_barrier\ns_barrier")
        e.label("c1_next"); s.stamp()
        s.disp("c1", ((1, "c1_q"), (2, "c1_a")))
        e(f"s_branch {lab}_fin")
        s.c_q(); s.c_a()
        e.label("l1_start"); s.k1_loader(lab)
        s.tail(lab, 0)
    def k2(s, lab):
        e = s.e
        s.head(lab)
        e(f"s_bfe_u32 s{sB}, s{sT0}, 0x10001\ns_lshl_b32 s{sB}, s{sB}, 2\ns_lshr_b32 s{sT2}, s{sT1}, 3\ns_add_u32 s{sB}, s{sB}, s{sT2}")
        e(f"s_and_b32 s{sNT}, s{sT0}, 1\ns_lshl_b32 s{sNT}, s{sNT}, 3\ns_and_b32 s{sT1}, s{sT1}, 7\ns_add_u32 s{sNT}, s{sNT}, s{sT1}")
        e(f"s_add_u32 s{sROT}, s{sT2}, s{sT1}\ns_and_b32 s{sROT}, s{sROT}, 3\ns_lshl_b32 s{sROT}, s{sROT}, 4")
        if not s.o["prot"]: e(f"s_mov_b32 s{sROT}, 0")
        e(f"s_cmp_ge_u32 s{sWAVE}, 4\ns_cbranch_scc1 l2_start")
        if s.o["prio"]: e("s_setprio 1")
        aO, aW, acc, fO, fW = 10, 12, 32, 64, 96
        s.fld(vT0, 0, 4); s.fld(vT1, 4, 1); s.fld(vT2, 5, 1)
        e(f"s_lshr_b32 s{sT0}, s{sWAVE}, 1\ns_and_b32 s{sT1}, s{sWAVE}, 1\ns_lshl_b32 s{sT2}, s{sT0}, 13\ns_add_u32 s{sT2}, s{sT2}, 0x10000")
        e(f"v_lshl_add_u32 v{vT3}, v{vT1}, 5, v{vT0}\nv_lshlrev_b32 v{vT3}, 4, v{vT3}\nv_lshl_add_u32 v{vT3}, v{vT2}, 10, v{vT3}\nv_add_u32 v{aO}, s{sT2}, v{vT3}")
        e(f"s_lshl_b32 s{sT2}, s{sT0}, 18\ns_lshl_b32 s{sA}, s{sT1}, 6\ns_add_u32 s{sT2}, s{sT2}, s{sA}\nv_lshlrev_b32 v{vST}, 12, v{vT0}\nv_lshl_add_u32 v{vST}, v{vT1}, 5, v{vST}\nv_lshl_add_u32 v{vST}, v{vT2}, 4, v{vST}\nv_add_u32 v{vST}, s{sT2}, v{vST}")
        s.fld(vT0, 2, 2); s.fld(vM0, 1, 1); s.fld(vM1, 0, 1); s.fld(vL0, 3, 2)
        e(f"v_lshl_add_u32 v{vT1}, v{vT1}, 2, v{vT0}\nv_lshl_add_u32 v{vT1}, v{vT2}, 4, v{vT1}\nv_lshlrev_b32 v{vL0}, 1, v{vL0}\nv_xor_b32 v{vL0}, v{vL0}, v{vM0}\nv_lshlrev_b32 v{vL0}, 4, v{vL0}\nv_lshl_add_u32 v{vL0}, v{vM1}, 3, v{vL0}\nv_lshl_add_u32 v{vL0}, v{vT1}, 7, v{vL0}")
        e(f"s_lshl_b32 s{sA}, s{sT1}, 6\nv_xor_b32 v{aW}, s{sA}, v{vL0}\nv_xor_b32 v{aW+1}, 32, v{aW}")
        for i in range(32): e(f"v_mov_b32 v{acc+i}, 0")
        e(f"s_mov_b32 s{sCNT}, 0\ns_barrier\ns_barrier"); s.stamp()
        def rdh(g):
            g %= 8; t, ks = g // 2, g % 2; L = []
            for nt in range(2):
                for h in range(2): L.append((f"ds_read_b64_tr_b16 {vr(fW+8*ks+4*nt+2*h,2)}, v{aW+nt} offset:{t*K16+(32*ks+8*h)*128}", ("W", g, nt)))
            for qt in range(4): L.append((f"ds_read_b128 {vr(fO+16*ks+4*qt,4)}, v{aO} offset:{t*K16+(qt//2)*4096+ks*2048+(qt%2)*256}", ("O", g, qt)))
            return [L[0], L[1], L[4], L[2], L[3], L[5], L[6], L[7]]
        for x in rdh(0): e.ds(*x)
        e.label("c2_loop"); e.forget(8)
        for g in range(8):
            nx = rdh(g + 1); ks = g % 2
            for m in range(8):
                qt, nt = m // 2, m % 2
                e.need(("W", g, nt), ("O", g, qt))
                a = acc + 8 * qt + 4 * nt
                e(f"{MF16} {vr(a,4)}, {vr(fW+8*ks+4*nt,4)}, {vr(fO+16*ks+4*qt,4)}, {vr(a,4)}")
                if m == 0 and ks == 1: e("s_barrier")
                e.ds(*nx[m])
        e(f"s_add_u32 s{sCNT}, s{sCNT}, 1\ns_cmp_lt_u32 s{sCNT}, 16\ns_cbranch_scc1 c2_loop")
        s.stamp()
        e(f"s_lshl_b32 s{sA}, s{sB}, 19\ns_lshl_b32 s{sT0}, s{sBR}, 11\ns_add_u32 s{sA}, s{sA}, s{sT0}\ns_lshl_b32 s{sT0}, s{sNT}, 7\ns_add_u32 s{sA}, s{sA}, s{sT0}")
        e.drain()
        for qt in range(4):
            a = acc + 8 * qt; r = fO + 4 * qt
            for i in range(4): e(f"v_cvt_pk_bf16_f32 v{r+i}, v{a+2*i}, v{a+2*i+1}")
            e(f"s_nop 1\nv_permlane16_swap_b32 v{r}, v{r+2}\nv_permlane16_swap_b32 v{r+1}, v{r+3}")
            e(f"buffer_store_dwordx4 {vr(r,4)}, v{vST}, {sr(SOUT,4)}, s{sA} offen\ns_add_u32 s{sA}, s{sA}, 0x10000")
        e(f"s_branch {lab}_fin")
        e.label("l2_start")
        LO, LW = 10, 11
        e(f"s_sub_u32 s{sT0}, s{sWAVE}, 4\ns_lshl_b32 s{sM4}, s{sT0}, 12\ns_lshl_b32 s{sM2}, s{sT0}, 11\nv_lshlrev_b32 v{LO}, 4, v0")
        s.fld(2, 4, 2); s.fld(4, 3, 3); s.fld(5, 0, 3)
        for i in range(2):
            e(f"s_lshl_b32 s{sT1}, s{sT0}, 4\ns_add_u32 s{sT1}, s{sT1}, {8*i}\nv_add_u32 v6, s{sT1}, v4\nv_lshlrev_b32 v7, 1, v2\nv_xor_b32 v7, v7, v5\nv_lshlrev_b32 v7, 4, v7\nv_lshl_add_u32 v7, v6, 11, v7\nv_subrev_u32 v{LW+i}, {1024*i}, v7")
        e(f"s_lshl_b32 s{sOB}, s{sBR}, 3\ns_add_u32 s{sOB}, s{sOB}, s{sB}\ns_lshl_b32 s{sOB}, s{sOB}, 20\ns_lshl_b32 s{sT0}, s{sT0}, 13\ns_add_u32 s{sOB}, s{sOB}, s{sT0}\ns_lshl_b32 s{sNT}, s{sNT}, 7\ns_mov_b32 s{sCNT}, 0")
        e.label("l2_loop")
        e(f"s_lshl_b32 s{sT0}, s{sCNT}, 2\ns_add_u32 s{sT0}, s{sT0}, s{sROT}\ns_and_b32 s{sT0}, s{sT0}, 63\ns_lshl_b32 s{sT1}, s{sT0}, 14\ns_add_u32 s{sT1}, s{sT1}, s{sOB}\ns_lshl_b32 s{sT2}, s{sT0}, 17\ns_add_u32 s{sT2}, s{sT2}, s{sNT}")
        for t in range(4):
            e(f"s_add_u32 m0, s{sM2}, {t*K16}\ns_add_u32 s{sA}, s{sT2}, {t<<17}")
            for i in range(2): s.dma(LW + i, SWO, sA, 1024 * i)
            e(f"s_add_u32 m0, s{sM4}, {65536+t*K16}\ns_add_u32 s{sA}, s{sT1}, {(t//2)*32768+(t%2)*4096}")
            for i in range(4): s.dma(LO, SWS, sA, 1024 * i)
            e("s_waitcnt vmcnt(6)\ns_barrier")
        e(f"s_add_u32 s{sCNT}, s{sCNT}, 1\ns_cmp_lt_u32 s{sCNT}, 16\ns_cbranch_scc1 l2_loop")
        e("s_waitcnt vmcnt(0)\ns_barrier\ns_barrier")
        s.tail(lab, 1)
    def build(s):
        k1, k2 = "mha_qa_kernel", NAME + "_kernel"
        hdr = open(f"cdna_kernels/{NAME}.s.ref").read().split("; Override")[0]
        t = hdr + f"; @launch kernel={k1} grid=(256,1,1) block=(512,1,1) lds=163840\n; @launch kernel={k2} grid=(256,1,1) block=(512,1,1) lds=131072\n"
        t += '.amdgcn_target "amdgcn-amd-amdhsa--gfx950"\n.text\n'
        s.k1(k1); s.k2(k2)
        bad = check(s.e.L)
        for b in bad: print("HAZARD", b)
        t += s.e.text() + '.section .rodata,"a"\n.p2align 6\n' + s.desc(k1) + ".p2align 6\n" + s.desc(k2)
        return t

if __name__ == "__main__":
    out = sys.argv[1]; o = eval("dict(" + (sys.argv[2] if len(sys.argv) > 2 else "") + ")")
    open(out, "w").write(G(**o).build())
```
